```python
import torch

def _softmax(x, axis=-1):
    return torch.softmax(x, dim=axis)
def _gelu(x):
    return torch.nn.functional.gelu(x, approximate="tanh")
def _silu(x):
    return torch.nn.functional.silu(x)
def _sigmoid(x):
    return torch.sigmoid(x)
def _layernorm(x, axis=-1, eps=1e-5):
    m = x.mean(dim=axis, keepdim=True)
    v = x.var(dim=axis, keepdim=True, unbiased=False)
    return (x - m) / torch.sqrt(v + eps)
def _scatter_add(tgt, idx, src, axis=0):
    return tgt.clone().index_add_(axis, idx, src)
def _segment_sum(src, seg, n):
    out = torch.zeros((n,) + src.shape[1:], dtype=src.dtype)
    return out.index_add_(0, seg, src)
def _pad(x, pw):
    flat = tuple(v for pair in reversed(pw) for v in pair)
    return torch.nn.functional.pad(x, flat)

kernel_name = 'interleave_layers__spectral_gfnet__mixer_channel_mlp__prompt'

def setup_inputs():

    _w = (lambda a: (lambda t: t.to(torch.bfloat16) if t.is_floating_point() else t)(torch.as_tensor(a)))
    def _A_setup():
        B, S, D = 1, 2048, 512
        Df = D // 2 + 1
        return {
            "x": _w((lambda *s: torch.randn(*s, dtype=torch.bfloat16) * 0.05)(B, S, D)),
            "w_r": _w((lambda *s: torch.randn(*s, dtype=torch.bfloat16) * 0.8)(S, Df) * 0.02),
            "w_i": _w((lambda *s: torch.randn(*s, dtype=torch.bfloat16) * 0.8)(S, Df) * 0.02),
        }
    _A_in = _A_setup()

    def _B_setup():
        B, S, D, F = 1, 2048, 512, 1792
        return {
            "x": _w((lambda *s: torch.randn(*s, dtype=torch.bfloat16) * 0.05)(B, S, D)),
            "w1": _w((lambda *s: torch.randn(*s, dtype=torch.bfloat16) * 0.8)(D, F) * (D ** -0.5)),
            "b1": _w((lambda *s: torch.randn(*s, dtype=torch.bfloat16) * 0.4)(F)),
            "w2": _w((lambda *s: torch.randn(*s, dtype=torch.bfloat16) * 0.05)(F, D) * (F ** -0.5)),
            "b2": _w((lambda *s: torch.randn(*s, dtype=torch.bfloat16) * 0.05)(D)),
        }
    _B_in = _B_setup()

    return {
        "A_x": _A_in["x"],
        "A_w_r": _A_in["w_r"],
        "A_w_i": _A_in["w_i"],
        "B_x": _B_in["x"],
        "B_w1": _B_in["w1"],
        "B_b1": _B_in["b1"],
        "B_w2": _B_in["w2"],
        "B_b2": _B_in["b2"],
    }

def reference(A_x, A_w_r, A_w_i, B_x, B_w1, B_b1, B_w2, B_b2):
    def _A_ref(x, w_r, w_i):
        B, S, D = x.shape
        X = (lambda x, axes=(-2,-1): torch.fft.rfft2(x.float(), dim=axes))(x, axes=(-2, -1))
        W = w_r + 1j * w_i
        X = X * W
        y = (lambda x, s, axes=(-2,-1): torch.fft.irfft2(x, s=s, dim=axes).to(torch.bfloat16))(X, (S, D), axes=(-2, -1))
        return y

    def _B_ref(x, w1, b1, w2, b2):
        y = _layernorm(x, axis=-1)
        h = _gelu(torch.einsum("bsd,df->bsf", y, w1) + b1)
        return torch.einsum("bsf,fd->bsd", h, w2) + b2

    x = A_x
    x = x + _A_ref(_layernorm(x, axis=-1), A_w_r, A_w_i)
    x = x + _B_ref(_layernorm(x, axis=-1), B_w1, B_b1, B_w2, B_b2)
    x = x + _A_ref(_layernorm(x, axis=-1), A_w_r, A_w_i)
    x = x + _B_ref(_layernorm(x, axis=-1), B_w1, B_b1, B_w2, B_b2)
    return x
```

```python
import re
import struct


def f2u(x):
    return struct.unpack('<I', struct.pack('<f', x))[0]


def fl(x):
    return '0x%08x' % f2u(x)


def vr(a, n=1):
    return 'v%d' % a if n == 1 else 'v[%d:%d]' % (a, a + n - 1)


def ar(a, n=1):
    return 'a%d' % a if n == 1 else 'a[%d:%d]' % (a, a + n - 1)


def sr(a, n=1):
    return 's%d' % a if n == 1 else 's[%d:%d]' % (a, a + n - 1)


_REG = re.compile(r'^-?(?:abs\(|\|)?([vas])(?:(\d+)|\[(\d+):(\d+)\])[\)|]?$')
TRANS = ('v_exp_f32', 'v_log_f32', 'v_rcp_f32', 'v_rsq_f32', 'v_sqrt_f32', 'v_sin_f32', 'v_cos_f32')


def regs_of(op):
    op = op.strip()
    if op in ('vcc', 'vcc_lo', 'vcc_hi'):
        return {('s', 'vcc')}
    if op == 'm0':
        return {('s', 'm0')}
    if op in ('exec', 'exec_lo', 'exec_hi'):
        return {('s', 'exec')}
    m = _REG.match(op)
    if not m:
        return set()
    kind = m.group(1)
    if m.group(2) is not None:
        return {(kind, int(m.group(2)))}
    return {(kind, i) for i in range(int(m.group(3)), int(m.group(4)) + 1)}


class Ins:
    def __init__(self, text):
        self.text = text
        body = text.split(';')[0].strip()
        self.label = None
        self.mn = ''
        self.w = set()
        self.r = set()
        self.srcc = set()
        self.srcab = set()
        self.sdata = set()
        self.kind = 'other'
        self.target = None
        self.states = 1
        self.dpp = False
        if not body or body.startswith('.'):
            if body.endswith(':'):
                self.label = body[:-1]
            self.kind = 'none'
            self.states = 0
            return
        if body.endswith(':'):
            self.label = body[:-1]
            self.kind = 'none'
            self.states = 0
            return
        parts = body.split(None, 1)
        mn = self.mn = parts[0]
        rest = parts[1] if len(parts) > 1 else ''
        ops = []
        depth = 0
        cur = ''
        for ch in rest:
            if ch in '[(':
                depth += 1
            if ch in '])':
                depth -= 1
            if ch == ',' and depth == 0:
                ops.append(cur.strip())
                cur = ''
            else:
                cur += ch
        if cur.strip():
            ops.append(cur.strip())
        mods = ''
        if ops:
            last = ops[-1].split(None, 1)
            ops[-1] = last[0]
            mods = last[1] if len(last) > 1 else ''
        R = [regs_of(o) for o in ops]
        allr = lambda xs: set().union(*xs) if xs else set()
        if mn == 's_nop':
            self.states = int(ops[0], 0) + 1
            self.kind = 'salu'
        elif mn.startswith('v_mfma'):
            self.kind = 'mfma'
            self.passes = 8 if '32x32x16' in mn else 4
            assert '32x32x16' in mn or '16x16x32' in mn, mn
            self.w = R[0]
            self.srcab = R[1] | R[2]
            self.srcc = R[3]
            self.r = self.srcab | self.srcc
        elif mn.startswith('v_'):
            self.kind = 'valu'
            self.dpp = any(k in mods for k in ('quad_perm', 'row_', 'wave_'))
            if mn.startswith(('v_permlane16_swap', 'v_permlane32_swap')):
                self.w = R[0] | R[1]
                self.r = R[0] | R[1]
            elif mn.startswith(('v_add_co', 'v_sub_co', 'v_addc_co', 'v_subb_co', 'v_mad_u64')):
                self.w = R[0] | R[1]
                self.r = allr(R[2:])
            else:
                self.w = R[0]
                self.r = allr(R[1:])
                if mn.startswith(('v_fmac', 'v_dot2c', 'v_pk_fmac')) or self.dpp:
                    self.r |= R[0]
                if mn.startswith('v_cmpx'):
                    self.w |= {('s', 'exec')}
        elif mn.startswith('ds_'):
            self.kind = 'ds'
            if mn.startswith(('ds_read', 'ds_bpermute', 'ds_permute', 'ds_swizzle')):
                self.w = R[0]
                self.r = allr(R[1:])
            else:
                self.r = allr(R)
        elif mn.startswith(('buffer_', 'global_')):
            self.kind = 'vmem'
            self.lds = ' lds' in (' ' + mods) or 'load_lds' in mn
            if mn in ('buffer_wbl2', 'buffer_inv'):
                pass
            elif 'load' in mn and not self.lds:
                self.w = R[0]
                self.r = allr(R[1:])
            else:
                self.r = allr(R)
                if 'atomic' in mn and 'sc0' in mods:
                    self.w = R[0]
                if 'store' in mn and ('x3' in mn or 'x4' in mn):
                    self.sdata = R[0] if mn.startswith('buffer_') else R[1]
            if self.lds:
                self.r |= {('s', 'm0')}
        elif mn.startswith('s_'):
            self.kind = 'salu'
            if mn.startswith(('s_cbranch', 's_branch')):
                self.target = ops[0]
            elif mn.startswith(('s_cmp', 's_waitcnt', 's_barrier', 's_endpgm', 's_setprio', 's_sleep', 's_bitcmp')):
                self.r = allr(R)
            else:
                self.w = R[0] if R else set()
                self.r = allr(R[1:])
                if 'saveexec' in mn:
                    self.w |= {('s', 'exec')}
        else:
            raise ValueError('unknown instruction: ' + text)


def need(p, c):
    n = 0
    vw = {x for x in p.w if x[0] in 'va'}
    sw = {x for x in p.w if x[0] == 's'}
    if p.kind == 'valu':
        dl = p.mn.startswith('v_dot2')
        if c.kind == 'mfma' and vw & c.r:
            n = max(n, 3 if dl else 2)
        if c.kind == 'mfma' and ('s', 'exec') in sw:
            n = max(n, 4)
        if c.kind == 'valu':
            if c.mn.startswith('v_permlane') and vw & c.r:
                n = max(n, 2)
            if c.dpp and vw & c.r:
                n = max(n, 2)
            if c.dpp and ('s', 'exec') in sw:
                n = max(n, 5)
            if c.mn.startswith(('v_readlane', 'v_readfirstlane')) and vw & c.r:
                n = max(n, 1)
            if c.mn.startswith(('v_readlane', 'v_readfirstlane', 'v_writelane', 'v_permlane')) and ('s', 'exec') in sw:
                n = max(n, 4)
            if p.mn.startswith(TRANS) and vw & c.r:
                n = max(n, 1)
            if sw & c.r:
                n = max(n, 4 if c.mn.startswith(('v_readlane', 'v_writelane')) else 2)
            if ('s', 'vcc') in sw and c.mn.startswith(('v_cndmask', 'v_addc', 'v_subb')):
                n = max(n, 2)
            if 'sdwa' in p.mn and vw & (c.r | c.w):
                n = max(n, 1)
        if dl and vw & (c.r | c.w):
            same_acc = c.mn == p.mn and not (vw & (c.r - c.w))
            if not same_acc:
                n = max(n, 3)
        if p.mn.startswith(TRANS) and c.kind in ('ds', 'vmem') and vw & c.r:
            n = max(n, 1)
        if c.kind == 'vmem' and sw & c.r:
            n = max(n, 5)
        if c.kind == 'salu' and sw & c.r:
            n = max(n, 1)
    if p.kind == 'mfma':
        big = {4: 8, 8: 12}[p.passes]
        if c.kind == 'mfma':
            if p.w & c.srcab:
                n = max(n, big)
            if p.w & c.srcc and not (p.w == c.srcc and p.passes == c.passes):
                n = max(n, big - 2)
            if p.w & c.w and not (p.w & c.srcc):
                n = max(n, big - 2)
        elif c.kind in ('valu', 'ds', 'vmem'):
            if p.w & (c.r | c.w):
                n = max(n, big)
            if c.kind == 'valu' and p.srcc & c.w:
                n = max(n, {4: 3, 8: 7}[p.passes])
    if p.kind == 'vmem' and p.sdata and p.sdata & c.w:
        n = max(n, 2)
    if p.kind == 'salu' and ('s', 'm0') in sw and c.kind == 'vmem' and getattr(c, 'lds', False):
        n = max(n, 1)
    return n


def fix_hazards(lines, verbose=False):
    ins = [Ins(l) for l in lines]
    inserted = 0
    i = 0
    while i < len(ins):
        c = ins[i]
        if c.kind in ('none',):
            i += 1
            continue
        worst = 0
        stack = [(i, 0)]
        seen = {}
        while stack:
            pos, dist = stack.pop()
            preds = []
            if pos > 0 and ins[pos - 1].mn not in ('s_branch', 's_endpgm', 's_setpc_b64'):
                preds.append(pos - 1)
            if ins[pos].label:
                preds += [n for n, x in enumerate(ins) if x.target == ins[pos].label]
            for q in preds:
                p = ins[q]
                if p.kind != 'none':
                    worst = max(worst, need(p, c) - dist)
                nd = dist + p.states
                if nd < 13 and seen.get(q, 99) > nd:
                    seen[q] = nd
                    stack.append((q, nd))
        if worst > 0:
            ins.insert(i, Ins('    s_nop %d' % (worst - 1)))
            inserted += worst
            if verbose:
                print('nop %d before: %s' % (worst, c.text.strip()))
            i += 1
        i += 1
    return [x.text for x in ins], inserted


class Asm:
    def __init__(self):
        self.lines = []
        self.uid = 0

    def __call__(self, text):
        for l in text.split('\n'):
            l = l.strip()
            if not l:
                continue
            self.lines.append(l if l.endswith(':') else '    ' + l)

    def label(self, name):
        self.lines.append(name + ':')

    def new_label(self, stem='L'):
        self.uid += 1
        return '%s_%d' % (stem, self.uid)

    def srd(self, d, base, nbytes):
        self('s_mov_b32 s%d, s%d' % (d, base))
        self('s_and_b32 s%d, s%d, 0xffff' % (d + 1, base + 1))
        self('s_mov_b32 s%d, 0x%x' % (d + 2, nbytes))
        self('s_mov_b32 s%d, 0x00020000' % (d + 3))


def interleave(main, fill, start=0, per=None):
    out = []
    n = len(main) - start
    k = 0
    for i, m in enumerate(main):
        out += m
        if i >= start:
            done = i - start + 1
            want = (len(fill) * done + n - 1) // n if per is None else min(len(fill), per * done)
            while k < want:
                out.append(fill[k])
                k += 1
    out += fill[k:]
    return out
```

```python
import math
import sys
from asmlib import Asm, fl, vr, ar, sr, fix_hazards, interleave

NAME = 'interleave_layers__spectral_gfnet__mixer_channel_mlp__prompt'

XT = 0x000000
XB = 131072
WT = 0x200000
WS = 8192 + 256
W1F = 0x480000
W2F = 0x680000
W2E = 0x880000
B2F = 0xB00000
SS0 = 0xB01000
SSP = 0xB04000
HE = 0xC00000
STAMP = 0x1800000
WSIZE = 0x2000000

ARG = dict(x=0, wr=8, wi=16, w1=32, b1=40, w2=48, b2=56, out=64, dbg=72, ws=80)
EPS = 1e-5
A512 = math.sqrt(1.0 / 512)

OPT = dict(stamp=False, map3='A', pf3=2, pf4=8)


def mfma32(d, a, b, c=None):
    return 'v_mfma_f32_32x32x16_bf16 %s, %s, %s, %s' % (d, a, b, d if c is None else c)


def mfma16(d, a, b, c=None):
    return 'v_mfma_f32_16x16x32_bf16 %s, %s, %s, %s' % (d, a, b, d if c is None else c)


def entry(a, name):
    a.lines.append('.p2align 8')
    a.lines.append('.globl %s' % name)
    a.lines.append('.type %s,@function' % name)
    a.label(name)


def stamp_begin(a):
    if OPT['stamp']:
        a('s_memrealtime s[90:91]')


def stamp_mid(a, n):
    if OPT['stamp']:
        a('s_memrealtime s[%d:%d]' % (92 + 2 * n, 93 + 2 * n))


def stamp_end(a, kidx, wsrd):
    if not OPT['stamp']:
        return
    lab = a.new_label('Lst')
    a('s_waitcnt vmcnt(0) lgkmcnt(0)')
    a('s_memrealtime s[98:99]')
    a('s_cmp_lg_u32 s3, 0')
    a('s_cbranch_scc1 %s' % lab)
    a('s_getreg_b32 s88, hwreg(HW_REG_XCC_ID)')
    a('s_getreg_b32 s89, hwreg(HW_REG_HW_ID)')
    a('s_waitcnt lgkmcnt(0)')
    for i, s in enumerate((90, 92, 94, 96, 98, 88, 89, 89)):
        a('v_mov_b32 v%d, s%d' % (4 + i, s))
    a('s_lshl_b32 s88, s2, 5')
    a('s_add_u32 s88, s88, 0x%x' % (STAMP + kidx * 32768))
    a('v_mov_b32 v1, 0')
    a('s_mov_b64 exec, 1')
    a('buffer_store_dwordx4 v[4:7], v1, %s, s88 offen' % sr(wsrd, 4))
    a('buffer_store_dwordx4 v[8:11], v1, %s, s88 offen offset:16' % sr(wsrd, 4))
    a.label(lab)


VF, VLO, VHI, VD = 16, 80, 96, 112


def fgen(a, sT, zero_dc):
    P, C = VD, VD + 8
    a('v_and_b32 v3, 31, v0')
    a('s_lshl_b32 s40, %s, 5' % sT)
    a('v_add_u32 v3, s40, v3')
    a('v_lshrrev_b32 v4, 1, v3')
    a('v_add_u32 v4, 1, v4')
    a('v_and_b32 v5, 1, v3')
    a('v_and_b32 v2, 1, v4')
    a('v_lshlrev_b32 v2, 31, v2')
    a('v_or_b32 v2, 1.0, v2')
    a('v_mov_b32 v6, 511')
    a('v_cmp_eq_u32 vcc, v6, v3')
    a('v_cndmask_b32 v4, v4, 0, vcc')
    a('v_cndmask_b32 v5, v5, 0, vcc')
    a('v_mov_b32 v7, %s' % fl(1.0 / 16))
    a('v_mov_b32 v8, %s' % fl(A512))
    if zero_dc:
        a('v_cndmask_b32 v8, v8, 0, vcc')
    a('v_cmp_lt_u32 vcc, 509, v3')
    a('v_cndmask_b32 v7, v7, v8, vcc')
    a('v_cvt_f32_u32 v4, v4')
    a('v_cvt_f32_u32 v5, v5')
    a('v_lshrrev_b32 v6, 5, v0')
    a('v_cvt_f32_u32 v6, v6')
    a('v_mul_f32 v5, 0.25, v5'.replace('0.25', fl(0.25)))
    a('v_mul_f32 v6, %s, v6' % fl(8.0 / 512))
    a('v_fma_f32 v5, v4, v6, v5')
    a('v_mul_f32 v8, %s, v4' % fl(1.0 / 32))
    a('v_cos_f32 v8, v8')
    for n in range(16):
        t, jj = n >> 3, n & 7
        a('v_fmamk_f32 v%d, v4, %s, v5' % (P + n, fl((16.0 * t + jj) / 512)))
    a('v_add_f32 v8, v8, v8')
    for n in range(16):
        a('v_cos_f32 v%d, v%d' % (P + n, P + n))
    a('v_mov_b32 v6, v7')
    for n in range(0, 16, 2):
        a('v_pk_mul_f32 %s, %s, v[6:7]' % (vr(P + n, 2), vr(P + n, 2)))
    for t in range(16):
        cur = P if t % 2 == 0 else C
        oth = C if t % 2 == 0 else P
        if t >= 2:
            for n in range(0, 8, 2):
                a('v_pk_fma_f32 %s, v[8:9], %s, %s op_sel_hi:[0,1,1] neg_lo:[0,0,1] neg_hi:[0,0,1]'
                  % (vr(cur + n, 2), vr(oth + n, 2), vr(cur + n, 2)))
        for n in range(0, 8, 2):
            a('v_cvt_pk_bf16_f32 v%d, v%d, v%d' % (VF + 4 * t + n // 2, cur + n, cur + n + 1))


def dft_rows_load(a, srd, sa, sb):
    a('v_lshlrev_b32 v1, 4, v0')
    a('s_mul_i32 s42, s3, %d' % (8 * 1040))
    for i in range(8):
        off = (i & 3) * sa + (i >> 2) * sb
        a('s_add_u32 s43, s41, %d' % off)
        a('s_add_u32 m0, s42, %d' % (i * 1040))
        a('buffer_load_dwordx4 v1, %s, s43 offen lds' % sr(srd, 4))


def dft_rows_main(a, fill, pre_lgkm=0):
    a('v_and_b32 v3, 31, v0')
    a('v_lshrrev_b32 v4, 5, v0')
    a('v_mul_u32_u24 v3, 1040, v3')
    a('v_lshl_add_u32 v3, v4, 4, v3')
    rd = lambda n: 'ds_read_b128 %s, v3 offset:%d' % (vr(VD + 4 * (n % 8), 4), (n >> 1) * 32 + (n & 1) * 512)
    for n in range(8):
        a(rd(n))
    steps = []
    for n in range(32):
        acc = vr(VHI if n & 1 else VLO, 16)
        st = ['s_waitcnt lgkmcnt(%d)' % min(7, 31 - n),
              mfma32(acc, vr(VD + 4 * (n % 8), 4), vr(VF + 4 * (n >> 1), 4), '0' if n < 2 else None)]
        if n + 8 < 32:
            st.append(rd(n + 8))
        steps.append(st)
    for l in interleave(steps, fill, start=0, per=4):
        a(l)


def dft_rows_finish(a):
    a('v_mov_b32 v3, v2')
    for n in range(0, 16, 2):
        a('v_pk_fma_f32 %s, v[2:3], %s, %s' % (vr(VLO + n, 2), vr(VHI + n, 2), vr(VLO + n, 2)))
    for n in range(0, 16, 2):
        a('v_cvt_pk_bf16_f32 v%d, v%d, v%d' % (VD + n // 2, VLO + n, VLO + n + 1))


def wave_lane(a):
    a('v_lshrrev_b32 v1, 6, v0')
    a('v_readfirstlane_b32 s3, v1')


def k1(a):
    entry(a, 'k1_kernel')
    stamp_begin(a)
    a('s_load_dwordx4 s[4:7], s[0:1], 0')
    a('s_load_dwordx2 s[8:9], s[0:1], %d' % ARG['wi'])
    a('s_load_dwordx2 s[10:11], s[0:1], %d' % ARG['w1'])
    a('s_load_dwordx2 s[12:13], s[0:1], %d' % ARG['ws'])
    wave_lane(a)
    a('s_cmp_ge_u32 s2, 480')
    a('s_cbranch_scc1 k1_b')
    a('v_and_b32 v0, 63, v0')
    a('s_cmp_ge_u32 s2, 256')
    a('s_cbranch_scc1 k1_c')
    a('s_and_b32 s30, s2, 7')
    a('s_lshr_b32 s31, s2, 5')
    a('s_lshl_b32 s31, s31, 3')
    a('s_add_u32 s30, s30, s31')
    a('s_lshr_b32 s31, s2, 3')
    a('s_and_b32 s31, s31, 3')
    a('s_lshl_b32 s32, s31, 2')
    a('s_add_u32 s32, s32, s3')
    a('s_lshr_b32 s33, s30, 2')
    a('s_and_b32 s34, s30, 3')
    a('s_lshl_b32 s41, s33, 7')
    a('s_lshl_b32 s35, s34, 2')
    a('s_add_u32 s41, s41, s35')
    a('s_and_b32 s35, s3, 2')
    a('s_add_u32 s41, s41, s35')
    a('s_and_b32 s35, s3, 1')
    a('s_lshl_b32 s35, s35, 4')
    a('s_add_u32 s41, s41, s35')
    a('s_lshl_b32 s41, s41, 10')
    a('s_waitcnt lgkmcnt(0)')
    a.srd(16, 4, 2048 * 1024)
    dft_rows_load(a, 16, 32768, 1024)
    a.srd(20, 12, WSIZE)
    fgen(a, 's32', False)
    a('s_lshl_b32 s35, s31, 3')
    a('s_lshl_b32 s36, s3, 1')
    a('s_add_u32 s35, s35, s36')
    a('s_mul_i32 s35, s35, 1040')
    a('v_add_u32 v5, s35, v1')
    a('v_mov_b32 v14, 0x3f803f80')
    for n in range(4):
        a('v_mov_b32 v%d, 0' % (10 + n))
    a('s_waitcnt vmcnt(0)')
    stamp_mid(a, 0)
    a('s_barrier')
    ST = 144
    a('ds_read_b128 %s, v5' % vr(ST, 4))
    a('ds_read_b128 %s, v5 offset:1040' % vr(ST + 4, 4))
    fill = []
    for n in range(4):
        for e in range(2):
            fill.append('v_dot2c_f32_bf16 v%d, v%d, v14' % (10 + e, ST + 4 * e + n))
            fill.append('v_dot2c_f32_bf16 v%d, v%d, v%d' % (12 + e, ST + 4 * e + n, ST + 4 * e + n))
    for m in ('quad_perm:[1,0,3,2] row_mask:0xf', 'quad_perm:[2,3,0,1] row_mask:0xf',
              'row_half_mirror row_mask:0xf', 'row_mirror row_mask:0xf',
              'row_bcast:15 row_mask:0xa', 'row_bcast:31 row_mask:0xc'):
        for n in range(4):
            fill.append('v_add_f32 v%d, v%d, v%d %s bank_mask:0xf' % (10 + n, 10 + n, 10 + n, m))
    for e in range(2):
        fill.append('v_mul_f32 v%d, v%d, v%d' % (10 + e, 10 + e, 10 + e))
    for e in range(2):
        fill.append('v_fmamk_f32 v%d, v%d, %s, v%d' % (12 + e, 10 + e, fl(-1.0 / 512), 12 + e))
    for e in range(2):
        fill.append('v_max_f32 v%d, 0, v%d' % (12 + e, 12 + e))
    fill += ['v_and_b32 v6, 31, v0', 'v_lshrrev_b32 v7, 5, v0', 'v_lshlrev_b32 v6, 8, v6',
             'v_lshl_add_u32 v6, v7, 4, v6',
             's_mul_i32 s36, s33, %d' % XB, 's_lshl_b32 s37, s32, 13', 's_add_u32 s36, s36, s37',
             's_lshl_b32 s37, s34, 6', 's_add_u32 s36, s36, s37',
             's_and_b32 s37, s3, 1', 's_lshl_b32 s37, s37, 1',
             's_and_b32 s38, s31, 1', 's_lshl_b32 s38, s38, 2', 's_add_u32 s37, s37, s38',
             's_lshr_b32 s38, s3, 1', 's_lshl_b32 s38, s38, 3', 's_add_u32 s37, s37, s38',
             's_lshr_b32 s38, s31, 1', 's_lshl_b32 s38, s38, 4', 's_add_u32 s37, s37, s38',
             's_lshl_b32 s38, s30, 5', 's_add_u32 s37, s37, s38', 's_lshl_b32 s37, s37, 2',
             's_add_u32 s37, s37, 0x%x' % SS0, 'v_mov_b32 v7, 0']
    dft_rows_main(a, fill)
    a('s_mov_b32 exec_lo, 0')
    a('s_mov_b32 exec_hi, 0x80000000')
    a('buffer_store_dwordx2 v[12:13], v7, s[20:23], s37 offen')
    a('s_mov_b64 exec, -1')
    dft_rows_finish(a)
    stamp_mid(a, 1)
    if XT:
        a('s_add_u32 s36, s36, 0x%x' % XT)
    a('buffer_store_dwordx4 %s, v6, s[20:23], s36 offen' % vr(VD, 4))
    a('buffer_store_dwordx4 %s, v6, s[20:23], s36 offen offset:32' % vr(VD + 4, 4))
    stamp_end(a, 0, 20)
    a('s_endpgm')

    a.label('k1_c')
    a('s_sub_u32 s30, s2, 256')
    a('s_and_b32 s33, s30, 7')
    a('s_lshr_b32 s31, s30, 5')
    a('s_lshl_b32 s31, s31, 3')
    a('s_add_u32 s33, s33, s31')
    a('s_lshr_b32 s31, s30, 3')
    a('s_and_b32 s31, s31, 3')
    a('s_lshl_b32 s32, s31, 2')
    a('s_add_u32 s32, s32, s3')
    a('v_lshrrev_b32 v1, 2, v0')
    a('v_mul_u32_u24 v1, 3584, v1')
    a('v_and_b32 v3, 3, v0')
    a('v_lshl_add_u32 v1, v3, 4, v1')
    a('s_mul_i32 s41, s3, %d' % (8 * 16 * 3584))
    a('s_lshl_b32 s35, s33, 6')
    a('s_add_u32 s41, s41, s35')
    a('s_lshl_b32 s42, s3, 13')
    a('s_waitcnt lgkmcnt(0)')
    a.srd(16, 10, 512 * 3584)
    for i in range(8):
        a('s_add_u32 s43, s41, %d' % (i * 16 * 3584))
        a('s_add_u32 m0, s42, %d' % (i * 1024))
        a('buffer_load_dwordx4 v1, s[16:19], s43 offen lds')
    a.srd(20, 12, WSIZE)
    fgen(a, 's32', True)
    a('v_lshrrev_b32 v3, 5, v0')
    a('v_lshlrev_b32 v3, 9, v3')
    a('v_bfe_u32 v4, v0, 2, 2')
    a('v_lshl_add_u32 v3, v4, 6, v3')
    a('v_bfe_u32 v4, v0, 4, 1')
    a('v_lshl_add_u32 v3, v4, 5, v3')
    a('v_and_b32 v4, 3, v0')
    a('v_lshl_add_u32 v3, v4, 3, v3')
    a('s_lshl_b32 s36, s33, 5')
    a('s_lshl_b32 s37, s32, 1')
    a('s_add_u32 s36, s36, s37')
    a('s_lshl_b32 s36, s36, 10')
    a('s_add_u32 s36, s36, 0x%x' % W1F)
    a('v_lshlrev_b32 v6, 4, v0')
    a('s_waitcnt vmcnt(0)')
    a('s_barrier')

    def rdc(n):
        base = (n >> 1) * 1024 + (n & 1) * 16384
        d = VD + 4 * (n % 6)
        return ['ds_read_b64_tr_b16 %s, v3 offset:%d' % (vr(d, 2), base),
                'ds_read_b64_tr_b16 %s, v3 offset:%d' % (vr(d + 2, 2), base + 256)]
    for n in range(6):
        for l in rdc(n):
            a(l)
    for n in range(32):
        a('s_waitcnt lgkmcnt(%d)' % (2 * min(5, 31 - n)))
        a(mfma32(vr(VHI if n & 1 else VLO, 16), vr(VF + 4 * (n >> 1), 4), vr(VD + 4 * (n % 6), 4),
                 '0' if n < 2 else None))
        if n + 6 < 32:
            for l in rdc(n + 6):
                a(l)
    for n in range(0, 16, 2):
        neg = '' if n & 2 else ' neg_lo:[0,1] neg_hi:[0,1]'
        a('v_pk_add_f32 %s, %s, %s%s' % (vr(VLO + n, 2), vr(VLO + n, 2), vr(VHI + n, 2), neg))
    for n in range(0, 16, 2):
        a('v_cvt_pk_bf16_f32 v%d, v%d, v%d' % (VD + n // 2, VLO + n, VLO + n + 1))
    a('buffer_store_dwordx4 %s, v6, s[20:23], s36 offen' % vr(VD, 4))
    a('buffer_store_dwordx4 %s, v6, s[20:23], s36 offen offset:1024' % vr(VD + 4, 4))
    stamp_end(a, 0, 20)
    a('s_endpgm')

    a.label('k1_b')
    a('s_cmp_ge_u32 s2, 608')
    a('s_cbranch_scc1 k1_end')
    a('s_sub_u32 s30, s2, 480')
    a('s_and_b32 s31, s30, 15')
    a('s_lshr_b32 s32, s30, 4')
    a('s_lshl_b32 s33, s31, 2')
    a('s_lshl_b32 s34, s32, 8')
    a('s_add_u32 s33, s33, s34')
    a('s_mul_i32 s33, s33, 514')
    a('v_lshlrev_b32 v1, 1, v0')
    a('v_add_u32 v1, 2, v1')
    a('s_waitcnt lgkmcnt(0)')
    a.srd(16, 6, 2048 * 514)
    a.srd(24, 8, 2048 * 514)
    for r in range(4):
        a('s_add_u32 s%d, s33, %d' % (36 + r, r * 64 * 514))
    for e in range(4):
        for r in range(4):
            a('buffer_load_ushort v%d, v1, s[16:19], s%d offen offset:%d' % (16 + 4 * e + r, 36 + r, e * 514))
            a('buffer_load_ushort v%d, v1, s[24:27], s%d offen offset:%d' % (32 + 4 * e + r, 36 + r, e * 514))
    a.srd(20, 12, WSIZE)
    a('s_lshr_b32 s34, s31, 2')
    a('s_lshl_b32 s34, s34, 11')
    a('s_and_b32 s35, s31, 3')
    a('s_lshl_b32 s35, s35, 6')
    a('s_add_u32 s34, s34, s35')
    a('s_lshl_b32 s35, s32, 8')
    a('s_add_u32 s34, s34, s35')
    a('s_add_u32 s34, s34, 0x%x' % WT)
    a('v_mul_u32_u24 v2, %d, v0' % WS)
    for e in range(4):
        a('s_waitcnt vmcnt(%d)' % (24 - 8 * e + e))
        for r in range(4):
            a('v_lshl_or_b32 v%d, v%d, 16, v%d' % (16 + 4 * e + r, 32 + 4 * e + r, 16 + 4 * e + r))
        a('buffer_store_dwordx4 %s, v2, s[20:23], s34 offen offset:%d' % (vr(16 + 4 * e, 4), 16 * e))
    stamp_end(a, 0, 20)
    a.label('k1_end')
    a('s_endpgm')
    return dict(name='k1_kernel', grid=608, lds=33280, vgpr=152, agpr=0)


C64, S64, N64 = 16, 24, 32
C32, S32, N32 = 40, 48, 56
TC, TS = 64, 72
WR, WI = 80, 88
XO = 96
FR = 112
AC = 144
TM = 160
BP = 176
XR = 184
WRAW = 192
GT = 200


def cmul_pack(a, cr, ci, conj):
    n1 = '' if conj else ' neg_lo:[0,1,0] neg_hi:[0,1,0]'
    n2 = ' neg_lo:[0,1,0] neg_hi:[0,1,0]' if conj else ''
    for n in range(0, 8, 2):
        a('v_pk_mul_f32 %s, %s, %s' % (vr(TM + n, 2), vr(AC + n, 2), vr(cr + n, 2)))
        a('v_pk_mul_f32 %s, %s, %s' % (vr(TM + 8 + n, 2), vr(AC + 8 + n, 2), vr(cr + n, 2)))
        a('v_pk_fma_f32 %s, %s, %s, %s%s' % (vr(TM + n, 2), vr(AC + 8 + n, 2), vr(ci + n, 2), vr(TM + n, 2), n1))
        a('v_pk_fma_f32 %s, %s, %s, %s%s' % (vr(TM + 8 + n, 2), vr(AC + n, 2), vr(ci + n, 2), vr(TM + 8 + n, 2), n2))
        a('v_cvt_pk_bf16_f32 v%d, v%d, v%d' % (BP + n // 2, TM + n, TM + n + 1))
        a('v_cvt_pk_bf16_f32 v%d, v%d, v%d' % (BP + 4 + n // 2, TM + 8 + n, TM + 9 + n))


def trig8(a, af, base, scale, cdst, sdst):
    for jj in range(8):
        a('v_fmamk_f32 v%d, %s, %s, %s' % (GT + jj, af, fl((16 * (jj >> 2) + (jj & 3)) * scale), base))
    for jj in range(8):
        a('v_cos_f32 v%d, v%d' % (cdst + jj, GT + jj))
        a('v_sin_f32 v%d, v%d' % (sdst + jj, GT + jj))


def col(a, npart, ssoff, kidx):
    a('v_lshrrev_b32 v2, 4, v0')
    a('v_mul_u32_u24 v2, %d, v2' % XB)
    a('v_and_b32 v3, 15, v0')
    a('v_lshl_add_u32 v2, v3, 4, v2')
    a('v_lshlrev_b32 v4, 5, v0')
    a('v_and_b32 v5, 63, v0')
    a('v_lshlrev_b32 v6, 4, v5')
    a('s_lshl_b32 s30, s2, 9')
    if XT:
        a('s_add_u32 s30, s30, 0x%x' % XT)
    a('s_mul_i32 s31, s2, %d' % WS)
    a('s_lshl_b32 s32, s3, 11')
    a('s_add_u32 s31, s31, s32')
    a('s_add_u32 s31, s31, 0x%x' % WT)
    a('s_waitcnt lgkmcnt(0)')
    a.srd(20, 12, WSIZE)
    a('buffer_load_dwordx4 %s, v2, s[20:23], s30 offen' % vr(XR, 4))
    a('buffer_load_dwordx4 %s, v2, s[20:23], s30 offen offset:256' % vr(XR + 4, 4))
    for n in range(npart):
        a('s_mov_b32 s33, 0x%x' % (ssoff + n * 8192))
        a('buffer_load_dwordx4 %s, v4, s[20:23], s33 offen' % vr(FR + 8 * n, 4))
        a('buffer_load_dwordx4 %s, v4, s[20:23], s33 offen offset:16' % vr(FR + 8 * n + 4, 4))
    a('buffer_load_dwordx4 %s, v6, s[20:23], s31 offen' % vr(WRAW, 4))
    a('buffer_load_dwordx4 %s, v6, s[20:23], s31 offen offset:1024' % vr(WRAW + 4, 4))
    a('v_lshrrev_b32 v7, 4, v5')
    a('v_lshlrev_b32 v8, 2, v7')
    a('v_cvt_f32_u32 v8, v8')
    a('s_lshl_b32 s32, s3, 4')
    a('v_add_u32 v9, s32, v3')
    a('v_cvt_f32_u32 v10, v9')
    a('v_cvt_f32_u32 v11, v3')
    a('v_mul_f32 v12, v10, v8')
    a('v_mul_f32 v13, v11, v8')
    a('v_mul_f32 v14, %s, v12' % fl(1.0 / 64))
    a('v_mul_f32 v13, %s, v13' % fl(1.0 / 32))
    a('v_mul_f32 v12, %s, v12' % fl(1.0 / 2048))
    a('v_and_b32 v9, 1, v9')
    a('s_mov_b32 s34, 0x80008000')
    a('v_mul_lo_u32 v9, v9, s34')
    G1, G2 = GT + 8, GT + 16
    trig8(a, 'v10', 'v14', 1.0 / 64, G1, G2)
    for n in range(4):
        a('v_cvt_pk_bf16_f32 v%d, v%d, v%d' % (C64 + n, G1 + 2 * n, G1 + 2 * n + 1))
        a('v_cvt_pk_bf16_f32 v%d, v%d, v%d' % (S64 + n, G2 + 2 * n, G2 + 2 * n + 1))
    for n in range(4):
        a('v_xor_b32 v%d, s34, v%d' % (N64 + n, S64 + n))
        a('v_xor_b32 v%d, v9, v%d' % (C64 + 4 + n, C64 + n))
        a('v_xor_b32 v%d, v9, v%d' % (S64 + 4 + n, S64 + n))
        a('v_xor_b32 v%d, v9, v%d' % (N64 + 4 + n, N64 + n))
    trig8(a, 'v11', 'v13', 1.0 / 32, G1, G2)
    for n in range(4):
        a('v_cvt_pk_bf16_f32 v%d, v%d, v%d' % (C32 + n, G1 + 2 * n, G1 + 2 * n + 1))
        a('v_cvt_pk_bf16_f32 v%d, v%d, v%d' % (S32 + n, G2 + 2 * n, G2 + 2 * n + 1))
    a('s_mov_b32 s35, 0x80000000')
    for n in range(4):
        a('v_xor_b32 v%d, s34, v%d' % (N32 + n, S32 + n))
        a('v_xor_b32 v%d, s35, v%d' % (C32 + 4 + n, C32 + n))
        a('v_xor_b32 v%d, s35, v%d' % (S32 + 4 + n, S32 + n))
        a('v_xor_b32 v%d, s35, v%d' % (N32 + 4 + n, N32 + n))
    trig8(a, 'v10', 'v12', 1.0 / 2048, TC, TS)
    a('s_lshr_b32 s32, s3, 1')
    a('s_lshl_b32 s32, s32, 10')
    a('s_and_b32 s36, s3, 1')
    a('s_lshl_b32 s36, s36, 3')
    a('s_add_u32 s32, s32, s36')
    a('v_add_u32 v8, s32, v6')
    a('v_lshrrev_b32 v9, 2, v3')
    a('v_xor_b32 v9, v9, v7')
    a('v_lshlrev_b32 v9, 3, v9')
    a('v_lshl_add_u32 v9, v3, 5, v9')
    a('s_lshl_b32 s32, s3, 9')
    a('s_add_u32 s32, s32, 8192')
    a('v_add_u32 v9, s32, v9')
    a('v_and_b32 v10, 3, v5')
    a('v_xor_b32 v10, v10, v7')
    a('v_lshlrev_b32 v10, 3, v10')
    a('v_lshrrev_b32 v11, 2, v5')
    a('v_lshl_add_u32 v10, v11, 5, v10')
    a('v_add_u32 v10, 8192, v10')
    a('s_cmp_eq_u32 s2, 255')
    a('s_cselect_b32 s36, 0, 1.0')
    a('s_mov_b32 s37, s36')
    a('s_waitcnt vmcnt(2)')
    stamp_mid(a, 0)
    step = 1
    while step < npart:
        for n in range(0, npart, 2 * step):
            for e in range(0, 8, 2):
                a('v_pk_add_f32 %s, %s, %s' % (vr(FR + 8 * n + e, 2), vr(FR + 8 * n + e, 2),
                                               vr(FR + 8 * (n + step) + e, 2)))
        step *= 2
    a('v_mov_b32 v11, %s' % fl(EPS * 2.0 ** 22))
    for e in range(8):
        a('v_fmamk_f32 v%d, v%d, %s, v11' % (FR + e, FR + e, fl(2.0 ** 22 / 512)))
    for e in range(8):
        a('v_rsq_f32 v%d, v%d' % (FR + e, FR + e))
    for c in range(2):
        for n in range(4):
            a('v_lshlrev_b32 v%d, 16, v%d' % (XO + 8 * c + 2 * n, XR + 4 * c + n))
            a('v_and_b32 v%d, 0xffff0000, v%d' % (XO + 8 * c + 2 * n + 1, XR + 4 * c + n))
    for n in range(0, 8, 2):
        a('v_pk_mul_f32 %s, %s, %s' % (vr(TM + n, 2), vr(XO + n, 2), vr(FR + n, 2)))
        a('v_pk_mul_f32 %s, %s, s[36:37]' % (vr(FR + n, 2), vr(FR + n, 2)))
        a('v_cvt_pk_bf16_f32 v%d, v%d, v%d' % (BP + n // 2, TM + n, TM + n + 1))
        a('v_pk_mul_f32 %s, %s, %s' % (vr(TM + 8 + n, 2), vr(XO + 8 + n, 2), vr(FR + n, 2)))
        a('v_cvt_pk_bf16_f32 v%d, v%d, v%d' % (BP + 4 + n // 2, TM + 8 + n, TM + 9 + n))
    for c in range(2):
        for u in range(2):
            a('ds_write_b64 v8, %s offset:%d' % (vr(BP + 4 * c + 2 * u, 2), (2 * c + u) * 2048))
    a('s_waitcnt vmcnt(0)')
    for n in range(8):
        a('v_lshlrev_b32 v%d, 16, v%d' % (WR + n, WRAW + n))
        a('v_and_b32 v%d, 0xffff0000, v%d' % (WI + n, WRAW + n))
    a('s_waitcnt lgkmcnt(0)')
    a('s_barrier')
    fr = lambda c, u, q: vr(FR + 4 * (4 * u + 2 * q + c), 4)
    for u in range(2):
        for q in range(2):
            for c in range(2):
                a('ds_read_b128 %s, v6 offset:%d' % (fr(c, u, q), ((2 * c + u) * 2 + q) * 1024))
    accr = lambda u: vr(AC + 4 * u, 4)
    acci = lambda u: vr(AC + 8 + 4 * u, 4)
    k = lambda b, i: vr(b + 4 * i, 4)
    for u in range(2):
        for q in range(2):
            a('s_waitcnt lgkmcnt(%d)' % (6 - 4 * u - 2 * q))
            z = '0' if q == 0 else None
            a(mfma16(accr(u), fr(0, u, q), k(C64, q), z))
            a(mfma16(acci(u), fr(1, u, q), k(C64, q), z))
            a(mfma16(accr(u), fr(1, u, q), k(S64, q)))
            a(mfma16(acci(u), fr(0, u, q), k(N64, q)))
    cmul_pack(a, TC, TS, True)
    br, bi = vr(BP, 4), vr(BP + 4, 4)
    for u in range(2):
        a(mfma16(accr(u), k(C32, u), br, '0'))
        a(mfma16(acci(u), k(C32, u), bi, '0'))
        a(mfma16(accr(u), k(S32, u), bi))
        a(mfma16(acci(u), k(N32, u), br))
    cmul_pack(a, WR, WI, False)
    for u in range(2):
        a(mfma16(accr(u), k(C32, u), br, '0'))
        a(mfma16(acci(u), k(C32, u), bi, '0'))
        a(mfma16(accr(u), k(N32, u), bi))
        a(mfma16(acci(u), k(S32, u), br))
    cmul_pack(a, TC, TS, False)
    for c in range(2):
        for u in range(2):
            a('ds_write_b64 v9, %s offset:%d' % (vr(BP + 4 * c + 2 * u, 2), (2 * c + u) * 2048))
    a('s_waitcnt lgkmcnt(0)')
    a('s_barrier')
    order = [(u, q, c) for u in range(2) for q in range(2) for c in range(2)]
    rd2 = lambda u, q, c, hf: 'ds_read_b64_tr_b16 %s, v10 offset:%d' % (
        vr(FR + 4 * (4 * u + 2 * q + c) + 2 * hf, 2), (2 * c + u) * 2048 + (32 * q + 16 * hf) * 32)
    for (u, q, c) in order[:6]:
        a(rd2(u, q, c, 0))
        a(rd2(u, q, c, 1))
    outr = lambda u: vr(XO + 4 * u, 4)
    outi = lambda u: vr(XO + 8 + 4 * u, 4)
    for u in range(2):
        for q in range(2):
            a('s_waitcnt lgkmcnt(%d)' % [8, 8, 4, 0][2 * u + q])
            a(mfma16(outr(u), k(C64, q), fr(0, u, q)))
            a(mfma16(outi(u), k(C64, q), fr(1, u, q)))
            if u == 0 and q == 0:
                for (u2, q2, c2) in order[6:]:
                    a(rd2(u2, q2, c2, 0))
                    a(rd2(u2, q2, c2, 1))
            a(mfma16(outr(u), k(N64, q), fr(1, u, q)))
            a(mfma16(outi(u), k(S64, q), fr(0, u, q)))
    for c in range(2):
        for n in range(0, 8, 2):
            a('v_cvt_pk_bf16_f32 v%d, v%d, v%d' % (BP + 4 * c + n // 2, XO + 8 * c + n, XO + 8 * c + n + 1))
    stamp_mid(a, 1)
    a('buffer_store_dwordx4 %s, v2, s[20:23], s30 offen' % vr(BP, 4))
    lab = a.new_label('Lcolend')
    a('s_cmp_eq_u32 s2, 255')
    a('s_cbranch_scc1 %s' % lab)
    a('buffer_store_dwordx4 %s, v2, s[20:23], s30 offen offset:256' % vr(BP + 4, 4))
    a.label(lab)
    stamp_end(a, kidx, 20)
    a('s_endpgm')


def k2(a):
    entry(a, 'k2_kernel')
    stamp_begin(a)
    a('s_load_dwordx2 s[12:13], s[0:1], %d' % ARG['ws'])
    a('s_load_dwordx4 s[4:7], s[0:1], %d' % ARG['w2'])
    wave_lane(a)
    a('s_cmp_ge_u32 s2, 256')
    a('s_cbranch_scc1 k2_d')
    col(a, 1, SS0, 1)
    a.label('k2_d')
    a('s_cmp_ge_u32 s2, 484')
    a('s_cbranch_scc1 k2_end')
    a('v_and_b32 v0, 63, v0')
    a('s_sub_u32 s30, s2, 256')
    a('s_and_b32 s33, s30, 7')
    a('s_lshr_b32 s31, s30, 5')
    a('s_lshl_b32 s31, s31, 3')
    a('s_add_u32 s33, s33, s31')
    a('s_lshr_b32 s31, s30, 3')
    a('s_and_b32 s31, s31, 3')
    a('s_lshl_b32 s41, s33, 5')
    a('s_cmp_ge_u32 s30, 224')
    a('s_cselect_b32 s44, 1, 0')
    a('s_cbranch_scc0 k2_d1')
    a('s_sub_u32 s31, s30, 224')
    a('s_mov_b32 s41, 0')
    a.label('k2_d1')
    a('s_lshl_b32 s32, s31, 2')
    a('s_add_u32 s32, s32, s3')
    a('s_lshl_b32 s35, s3, 3')
    a('s_add_u32 s41, s41, s35')
    a('s_lshl_b32 s41, s41, 10')
    a('s_waitcnt lgkmcnt(0)')
    a('s_cmp_eq_u32 s44, 1')
    a('s_cselect_b32 s16, s6, s4')
    a('s_cselect_b32 s17, s7, s5')
    a('s_mov_b32 s18, 0x%x' % (1792 * 1024))
    a('s_cselect_b32 s18, 1024, s18')
    a('s_and_b32 s17, s17, 0xffff')
    a('s_mov_b32 s19, 0x00020000')
    dft_rows_load(a, 16, 1024, 4096)
    a.srd(20, 12, WSIZE)
    fgen(a, 's32', False)
    a('s_mul_i32 s36, s32, 112')
    a('s_lshl_b32 s37, s33, 1')
    a('s_add_u32 s36, s36, s37')
    a('s_lshl_b32 s36, s36, 10')
    a('s_add_u32 s36, s36, 0x%x' % W2F)
    a('s_waitcnt vmcnt(0)')
    a('s_barrier')
    dft_rows_main(a, [])
    dft_rows_finish(a)
    a('s_cmp_eq_u32 s44, 1')
    a('s_cbranch_scc1 k2_d2')
    a('buffer_store_dwordx4 %s, v1, s[20:23], s36 offen' % vr(VD, 4))
    a('buffer_store_dwordx4 %s, v1, s[20:23], s36 offen offset:1024' % vr(VD + 4, 4))
    stamp_end(a, 1, 20)
    a('s_endpgm')
    a.label('k2_d2')
    a('s_lshl_b32 s36, s32, 7')
    a('s_add_u32 s36, s36, 0x%x' % B2F)
    a('v_lshlrev_b32 v1, 2, v0')
    a('s_mov_b32 exec_hi, 0')
    a('buffer_store_dword v%d, v1, s[20:23], s36 offen' % VLO)
    a.label('k2_end')
    a('s_endpgm')
    return dict(name='k2_kernel', grid=484, lds=33280, vgpr=224, agpr=0)


def slot16(a, dst, tmp):
    a('v_and_b32 %s, 0x33, v0' % dst)
    a('v_bfe_u32 %s, v0, 2, 1' % tmp)
    a('v_lshl_or_b32 %s, %s, 3, %s' % (dst, tmp, dst))
    a('v_bfe_u32 %s, v0, 3, 1' % tmp)
    a('v_lshl_or_b32 %s, %s, 2, %s' % (dst, tmp, dst))
    a('v_lshlrev_b32 %s, 4, %s' % (dst, dst))


def k5(a):
    entry(a, 'k5_kernel')
    stamp_begin(a)
    a('s_load_dwordx2 s[12:13], s[0:1], %d' % ARG['ws'])
    a('s_load_dwordx2 s[4:5], s[0:1], %d' % ARG['w2'])
    wave_lane(a)
    a('s_cmp_ge_u32 s2, 256')
    a('s_cbranch_scc1 k5_e')
    col(a, 8, SSP, 4)
    a.label('k5_e')
    a('v_and_b32 v0, 63, v0')
    a('s_cmp_ge_u32 s2, 368')
    a('s_cbranch_scc1 k5_f')
    a('s_sub_u32 s30, s2, 256')
    a('s_lshl_b32 s31, s30, 4')
    a('s_lshl_b32 s32, s3, 2')
    a('s_add_u32 s31, s31, s32')
    a('s_lshl_b32 s31, s31, 10')
    a('s_mul_i32 s33, s32, 1088')
    a('v_lshlrev_b32 v1, 4, v0')
    a('s_waitcnt lgkmcnt(0)')
    a.srd(16, 4, 1792 * 1024)
    for i in range(4):
        a('s_add_u32 s34, s31, %d' % (i * 1024))
        a('s_add_u32 m0, s33, %d' % (i * 1088))
        a('buffer_load_dwordx4 v1, s[16:19], s34 offen lds')
    a.srd(20, 12, WSIZE)
    a('v_lshrrev_b32 v3, 5, v0')
    a('v_bfe_u32 v4, v0, 2, 2')
    a('v_lshl_add_u32 v3, v3, 2, v4')
    a('v_mul_u32_u24 v3, 1088, v3')
    a('v_bfe_u32 v4, v0, 4, 1')
    a('v_lshl_add_u32 v3, v4, 5, v3')
    a('v_and_b32 v4, 3, v0')
    a('v_lshl_add_u32 v3, v4, 3, v3')
    a('s_lshl_b32 s34, s3, 8')
    a('v_add_u32 v3, s34, v3')
    slot16(a, 'v5', 'v4')
    a('s_mul_i32 s34, s32, 144')
    a('s_add_u32 s34, s34, s30')
    a('s_lshl_b32 s34, s34, 10')
    a('s_add_u32 s34, s34, 0x%x' % W2E)
    a('s_waitcnt vmcnt(0)')
    a('s_barrier')
    for i in range(4):
        for hf in range(2):
            a('ds_read_b64_tr_b16 %s, v3 offset:%d' % (vr(16 + 4 * i + 2 * hf, 2), hf * 8 * 1088 + i * 64))
    for i in range(4):
        a('s_waitcnt lgkmcnt(%d)' % (6 - 2 * i))
        a('buffer_store_dwordx4 %s, v5, s[20:23], s34 offen' % vr(16 + 4 * i, 4))
        a('s_add_u32 s34, s34, %d' % (144 * 1024))
    stamp_end(a, 4, 20)
    a('s_endpgm')
    a.label('k5_f')
    a('s_cmp_ge_u32 s2, 496')
    a('s_cbranch_scc1 k5_end')
    a('s_sub_u32 s30, s2, 368')
    a('s_lshl_b32 s30, s30, 2')
    a('s_add_u32 s30, s30, s3')
    a('s_lshr_b32 s31, s30, 5')
    a('s_and_b32 s32, s30, 31')
    slot16(a, 'v5', 'v4')
    a('v_bfe_u32 v5, v5, 4, 5')
    a('s_lshl_b32 s33, s31, 5')
    a('v_add_u32 v5, s33, v5')
    a('v_cvt_f32_u32 v5, v5')
    a('v_mul_f32 v5, %s, v5' % fl(1.0 / 512))
    a('v_lshrrev_b32 v6, 5, v0')
    a('s_lshl_b32 s33, s32, 3')
    a('s_add_u32 s33, s33, 1')
    a('v_lshl_add_u32 v6, v6, 1, s33')
    a('v_mov_b32 v9, %s' % fl(A512))
    for n in range(4):
        a('v_add_u32 v7, %d, v6' % (4 * (n >> 1) + (n & 1)))
        a('v_cvt_f32_u32 v8, v7')
        a('v_mul_f32 v8, v8, v5')
        a('v_fract_f32 v8, v8')
        a('v_cos_f32 v10, v8')
        a('v_sin_f32 v11, v8')
        if n == 3:
            a('v_cmp_eq_u32 vcc, 0x100, v7')
            a('v_mul_f32 v12, v9, v10')
        a('v_mul_f32 v10, %s, v10' % fl(1.0 / 16))
        a('v_mul_f32 v11, %s, v11' % fl(-1.0 / 16))
        if n == 3:
            a('v_cndmask_b32 v10, v10, v12, vcc')
            a('v_cndmask_b32 v11, v11, v9, vcc')
        a('v_cvt_pk_bf16_f32 v%d, v10, v11' % (16 + n))
    a('s_mul_i32 s34, s31, 144')
    a('s_add_u32 s34, s34, s32')
    a('s_add_u32 s34, s34, 112')
    a('s_lshl_b32 s34, s34, 10')
    a('s_add_u32 s34, s34, 0x%x' % W2E)
    a('v_lshlrev_b32 v1, 4, v0')
    a('s_waitcnt lgkmcnt(0)')
    a.srd(20, 12, WSIZE)
    a('buffer_store_dwordx4 v[16:19], v1, s[20:23], s34 offen')
    stamp_end(a, 4, 20)
    a.label('k5_end')
    a('s_endpgm')
    return dict(name='k5_kernel', grid=496, lds=17408, vgpr=224, agpr=0)


def gemm1(a):
    ACC, XF, BI, GT1, PK = 32, 96, 128, 144, 152
    RBUF = 131072
    PF = OPT['pf3']
    entry(a, 'k6_kernel')
    a('s_mov_b32 s45, 1')
    a('s_branch g1_body')
    entry(a, 'k3_kernel')
    a('s_mov_b32 s45, 0')
    a.label('g1_body')
    stamp_begin(a)
    a('s_load_dwordx2 s[12:13], s[0:1], %d' % ARG['ws'])
    a('s_load_dwordx2 s[4:5], s[0:1], %d' % ARG['b1'])
    a('s_cmp_ge_u32 s2, 224')
    a('s_cbranch_scc1 g1_end')
    wave_lane(a)
    a('v_and_b32 v0, 63, v0')
    a('s_and_b32 s32, s2, 7')
    a('s_lshr_b32 s33, s2, 3')
    if OPT['map3'] == 'A':
        a('s_and_b32 s30, s33, 1')
        a('s_lshl_b32 s32, s32, 1')
        a('s_add_u32 s30, s30, s32')
        a('s_lshr_b32 s31, s33, 1')
    else:
        a('s_and_b32 s30, s33, 3')
        a('s_lshr_b32 s34, s32, 1')
        a('s_lshl_b32 s34, s34, 2')
        a('s_add_u32 s30, s30, s34')
        a('s_and_b32 s34, s32, 1')
        a('s_mul_i32 s34, s34, 7')
        a('s_lshr_b32 s31, s33, 2')
        a('s_add_u32 s31, s31, s34')
    a('s_lshl_b32 s32, s31, 2')
    a('s_add_u32 s32, s32, s3')
    a('s_lshl_b32 s33, s3, 12')
    a('s_mul_i32 s34, s30, %d' % XB)
    a('s_add_u32 s34, s34, s33')
    if XT:
        a('s_add_u32 s34, s34, 0x%x' % XT)
    a('s_lshl_b32 s35, s32, 15')
    a('s_add_u32 s35, s35, 0x%x' % W1F)
    a('v_lshrrev_b32 v2, 4, v0')
    a('v_lshlrev_b32 v3, 2, v2')
    a('v_xor_b32 v3, v3, v0')
    a('v_lshlrev_b32 v3, 4, v3')
    a('v_lshlrev_b32 v1, 4, v0')
    a('v_lshrrev_b32 v4, 5, v0')
    a('v_lshlrev_b32 v5, 3, v4')
    a('s_lshl_b32 s36, s32, 6')
    a('s_waitcnt lgkmcnt(0)')
    a.srd(20, 12, WSIZE)
    a.srd(16, 4, 1792 * 2)

    def loads(G):
        out = ['s_add_u32 m0, s33, %d' % (G * 16384)]
        out.append('s_add_u32 s37, s34, %d' % (G * 16384))
        out.append('s_add_u32 s38, s35, %d' % (G * 4096))
        for i in range(4):
            out.append('buffer_load_dwordx4 v3, s[20:23], s37 offen offset:%d lds' % (i * 1024))
            out.append('buffer_load_dwordx4 %s, v1, s[20:23], s38 offen offset:%d'
                       % (ar(16 * G + 4 * i, 4), i * 1024))
        return out
    for l in loads(0):
        a(l)
    for n in range(4):
        a('buffer_load_dwordx2 %s, v5, s[16:19], s36 offen offset:%d' % (vr(PK + 2 * n, 2), 16 * n))
    for G in range(1, PF + 1):
        for l in loads(G):
            a(l)
    a('v_bfe_u32 v6, v0, 2, 2')
    a('v_lshl_add_u32 v7, v4, 2, v6')
    a('v_lshlrev_b32 v7, 8, v7')
    a('v_bfe_u32 v8, v0, 4, 1')
    a('v_lshl_add_u32 v7, v8, 5, v7')
    a('v_and_b32 v8, 3, v0')
    a('v_lshl_add_u32 v7, v8, 3, v7')
    a('v_xor_b32 v6, s3, v6')
    for i in range(4):
        a('v_xor_b32 v8, %d, v6' % i)
        a('v_lshl_add_u32 v%d, v8, 6, v7' % (16 + i))
        a('v_add_u32 v%d, 0x10000, v%d' % (20 + i, 16 + i))
    slot16(a, 'v24', 'v8')
    a('v_mov_b32 v25, 0')
    a('v_mov_b32 v26, 0')
    a('v_cmp_eq_u32 vcc, 0, v4')
    a('v_mov_b32 v27, 0xffff')
    a('v_cndmask_b32 v27, v27, -1, vcc')
    a('v_and_b32 v28, 31, v0')
    a('v_lshlrev_b32 v28, 2, v28')
    a('v_add_u32 v28, %d, v28' % RBUF)

    def reads(t):
        out = []
        for i in range(4):
            for hf in range(2):
                out.append('ds_read_b64_tr_b16 %s, v%d offset:%d' % (
                    vr(XF + 16 * (t & 1) + 4 * i + 2 * hf, 2), (16 if t < 16 else 20) + i,
                    (t & 15) * 4096 + hf * 2048))
        return out
    issued = PF + 1
    a('s_waitcnt vmcnt(%d)' % (8 * PF + 4))
    stamp_mid(a, 0)
    a('s_barrier')
    for l in reads(0):
        a(l)
    for t in range(32):
        G = t >> 2
        rd = []
        if t + 1 < 32:
            if (t + 1) % 4 == 0:
                a('s_waitcnt vmcnt(%d)' % (8 * (issued - (G + 2))))
                a('s_barrier')
            rd = reads(t + 1)
        extra = []
        if t % 4 == 0 and issued < 8:
            extra = loads(issued)
            issued += 1
        xb = XF + 16 * (t & 1)
        dots = []
        for n in range(4):
            if t == 31 and n == 3:
                dots.append('v_and_b32 v29, v27, v%d' % (xb + n))
                dots.append('v_dot2c_f32_bf16 v26, v29, v29')
            else:
                dots.append('v_dot2c_f32_bf16 v%d, v%d, v%d' % (25 + (n & 1), xb + n, xb + n))
        if t == 1:
            for n in range(8):
                extra.append('v_lshlrev_b32 v%d, 16, v%d' % (BI + 2 * n, PK + n))
                extra.append('v_and_b32 v%d, 0xffff0000, v%d' % (BI + 2 * n + 1, PK + n))
            a('s_waitcnt vmcnt(%d)' % (8 * (issued - 1)))
        nrd = 0
        for i in range(4):
            a('s_waitcnt lgkmcnt(%d)' % (6 - 2 * i + nrd))
            a(mfma32(vr(ACC + 16 * i, 16), ar(4 * t, 4), vr(xb + 4 * i, 4), '0' if t == 0 else None))
            for l in rd[2 * i:2 * i + 2]:
                a(l)
                nrd += 1
            lo, hi = len(dots) * i // 4, len(dots) * (i + 1) // 4
            for l in dots[lo:hi]:
                a(l)
            lo, hi = len(extra) * i // 4, len(extra) * (i + 1) // 4
            for l in extra[lo:hi]:
                a(l)
    a('v_add_f32 v25, v25, v26')
    a('v_mov_b32 v26, v25')
    a('v_permlane32_swap_b32 v25, v26')
    a('v_add_f32 v25, v25, v26')
    a('v_mul_f32 v25, %s, v25' % fl(1.0 / 512))
    a('v_add_f32 v26, %s, v25' % fl(EPS))
    a('v_rsq_f32 v26, v26')
    a('v_mul_f32 v25, v25, v26')
    a('v_mul_f32 v25, v25, v26')
    a('v_add_f32 v25, %s, v25' % fl(EPS))
    a('v_rsq_f32 v25, v25')
    a('v_mul_f32 v8, v25, v26')
    a('s_lshl_b32 s37, s3, 7')
    a('v_add_u32 v6, s37, v28')
    a('ds_write_b32 v6, v8')
    a('s_waitcnt lgkmcnt(0)')
    a('s_barrier')
    for i in range(1, 4):
        a('v_xor_b32 v7, %d, v6' % (128 * i))
        a('ds_read_b32 v%d, v7' % (8 + 2 * i))
    stamp_mid(a, 1)
    z = 2.0 * math.sqrt(2.0 / math.pi) * math.log2(math.e)
    a('s_mov_b32 s40, %s' % fl(-z * 0.044715))
    a('s_mov_b32 s41, s40')
    a('v_mov_b32 v6, %s' % fl(-z))
    a('v_mov_b32 v7, v6')
    a('s_lshl_b32 s37, s30, 2')
    a('s_lshl_b32 s39, s32, 1')
    for i in range(4):
        if i == 1:
            a('s_waitcnt lgkmcnt(0)')
        a('s_xor_b32 s38, s3, %d' % i)
        a('s_add_u32 s38, s38, s37')
        a('s_mul_i32 s38, s38, 144')
        a('s_add_u32 s38, s38, s39')
        a('s_lshl_b32 s38, s38, 10')
        a('s_add_u32 s38, s38, 0x%x' % HE)
        pk = PK + 8 * (i & 1)
        for half in range(2):
            x0 = ACC + 16 * i + 8 * half
            for n in range(0, 8, 2):
                a('v_pk_fma_f32 %s, %s, %s, %s op_sel_hi:[1,0,1]' % (
                    vr(x0 + n, 2), vr(x0 + n, 2), vr(8 + 2 * i, 2), vr(BI + 8 * half + n, 2)))
            for n in range(0, 8, 2):
                a('v_pk_mul_f32 %s, %s, %s' % (vr(GT1 + n, 2), vr(x0 + n, 2), vr(x0 + n, 2)))
            for n in range(0, 8, 2):
                a('v_pk_fma_f32 %s, %s, s[40:41], v[6:7]' % (vr(GT1 + n, 2), vr(GT1 + n, 2)))
            for n in range(0, 8, 2):
                a('v_pk_mul_f32 %s, %s, %s' % (vr(GT1 + n, 2), vr(GT1 + n, 2), vr(x0 + n, 2)))
            for n in range(8):
                a('v_exp_f32 v%d, v%d' % (GT1 + n, GT1 + n))
            for n in range(0, 8, 2):
                a('v_pk_add_f32 %s, %s, 1.0 op_sel_hi:[1,0]' % (vr(GT1 + n, 2), vr(GT1 + n, 2)))
            for n in range(8):
                a('v_rcp_f32 v%d, v%d' % (GT1 + n, GT1 + n))
            for n in range(0, 8, 2):
                a('v_pk_mul_f32 %s, %s, %s' % (vr(GT1 + n, 2), vr(GT1 + n, 2), vr(x0 + n, 2)))
            for n in range(0, 8, 2):
                a('v_cvt_pk_bf16_f32 v%d, v%d, v%d' % (pk + 4 * half + n // 2, GT1 + n, GT1 + n + 1))
            a('buffer_store_dwordx4 %s, v24, s[20:23], s38 offen offset:%d' % (vr(pk + 4 * half, 4), 1024 * half))
    stamp_mid(a, 2)
    a('s_cmp_eq_u32 s45, 0')
    a('s_cbranch_scc1 g1_done')
    a('s_cmp_ge_u32 s31, 8')
    a('s_cbranch_scc1 g1_done')
    a('s_lshl_b32 s38, s31, 14')
    a('v_add_u32 v16, s38, v16')
    for n in range(4):
        for hf in range(2):
            a('ds_read_b64_tr_b16 %s, v16 offset:%d' % (vr(XF + 4 * n + 2 * hf, 2), n * 4096 + hf * 2048))
    a('s_add_u32 s38, s37, s3')
    a('s_mul_i32 s38, s38, 144')
    a('s_lshl_b32 s39, s31, 2')
    a('s_add_u32 s38, s38, s39')
    a('s_add_u32 s38, s38, 112')
    a('s_lshl_b32 s38, s38, 10')
    a('s_add_u32 s38, s38, 0x%x' % HE)
    for n in range(4):
        a('s_waitcnt lgkmcnt(%d)' % (6 - 2 * n))
        a('buffer_store_dwordx4 %s, v24, s[20:23], s38 offen offset:%d' % (vr(XF + 4 * n, 4), 1024 * n))
    a.label('g1_done')
    if OPT['stamp']:
        a('s_mul_i32 s46, s45, %d' % (3 * 1024))
        a('s_add_u32 s2, s2, s46')
    stamp_end(a, 2, 20)
    a.label('g1_end')
    a('s_endpgm')
    d = dict(grid=224, lds=131072 + 512, vgpr=168, agpr=128)
    return dict(d, name='k3_kernel'), dict(d, name='k6_kernel')


def gemm2(a, last):
    name = 'k7_kernel' if last else 'k4_kernel'
    KW = 36 if last else 28
    PF = OPT['pf4']
    ACC, RING, EP = 32, 96, 16
    entry(a, name)
    stamp_begin(a)
    a('s_load_dwordx2 s[12:13], s[0:1], %d' % ARG['ws'])
    if last:
        a('s_load_dwordx4 s[4:7], s[0:1], %d' % ARG['b2'])
    a('s_cmp_ge_u32 s2, 256')
    a('s_cbranch_scc1 %s_end' % name)
    wave_lane(a)
    a('v_and_b32 v0, 63, v0')
    a('s_and_b32 s30, s2, 7')
    a('s_lshl_b32 s30, s30, 2')
    a('s_bfe_u32 s31, s2, 0x20003')
    a('s_add_u32 s30, s30, s31')
    a('s_lshr_b32 s31, s2, 5')
    mt, nt = ('s31', 's30') if last else ('s30', 's31')
    na, nb = (144, 144) if last else (144, 112)
    ba, bb = (W2E, HE) if last else (HE, W2F)
    a('s_mul_i32 s32, s3, %d' % KW)
    a('s_lshr_b32 s33, s3, 1')
    a('s_lshl_b32 s34, %s, 1' % mt)
    a('s_add_u32 s35, s34, s33')
    a('s_xor_b32 s36, s35, 1')
    for d, s in ((40, 35), (41, 36)):
        a('s_mul_i32 s%d, s%d, %d' % (d, s, na))
        a('s_add_u32 s%d, s%d, s32' % (d, d))
        a('s_lshl_b32 s%d, s%d, 10' % (d, d))
        a('s_add_u32 s%d, s%d, 0x%x' % (d, d, ba))
    a('s_mul_i32 s42, %s, %d' % (nt, 2 * nb))
    a('s_add_u32 s42, s42, s32')
    a('s_lshl_b32 s42, s42, 10')
    a('s_add_u32 s42, s42, 0x%x' % bb)
    a('s_add_u32 s43, s42, %d' % (nb * 1024))
    a('v_lshlrev_b32 v1, 4, v0')
    a('s_and_b32 s33, s3, 1')
    a('s_lshl_b32 s33, s33, 8')
    a('v_xor_b32 v2, s33, v1')
    a('s_waitcnt lgkmcnt(0)')
    a.srd(20, 12, WSIZE)

    def loads(t):
        out = []
        if t and t % 4 == 0:
            out += ['s_add_u32 s%d, s%d, 4096' % (s, s) for s in (40, 41, 42, 43)]
        r = RING + 16 * (t % PF)
        for n, (v, s) in enumerate((('v2', 40), ('v1', 42), ('v1', 43), ('v2', 41))):
            out.append('buffer_load_dwordx4 %s, %s, s[20:23], s%d offen offset:%d'
                       % (vr(r + 4 * n, 4), v, s, (t % 4) * 1024))
        return out
    for t in range(PF):
        for l in loads(t):
            a(l)
    a('v_and_b32 v3, 31, v0')
    a('v_lshrrev_b32 v4, 5, v0')
    if last:
        a.srd(16, 4, 1024)
        a.srd(24, 6, 2048 * 1024)
        a('s_lshl_b32 s44, s31, 7')
        a('s_lshl_b32 s45, s3, 5')
        a('s_add_u32 s44, s44, s45')
        a('v_lshlrev_b32 v5, 4, v4')
        epi = ['buffer_load_dwordx4 %s, v5, s[16:19], s44 offen' % vr(EP, 4)]
        a('v_and_b32 v6, 3, v0')
        a('v_lshlrev_b32 v6, 5, v6')
        a('v_bfe_u32 v7, v0, 2, 1')
        a('v_add_u32 v6, v6, v7')
        a('v_bfe_u32 v7, v0, 4, 1')
        a('v_lshl_add_u32 v6, v7, 1, v6')
        a('v_bfe_u32 v7, v0, 3, 1')
        a('v_lshl_add_u32 v6, v7, 4, v6')
        a('v_lshl_add_u32 v6, v6, 10, v5')
        a('s_and_b32 s45, s30, 1')
        a('s_lshl_b32 s45, s45, 13')
        a('s_lshr_b32 s46, s30, 1')
        a('s_lshl_b32 s46, s46, 17')
        a('s_add_u32 s45, s45, s46')
        a('s_add_u32 s45, s45, s44')
        a('s_add_u32 s46, s45, 4096')
    else:
        a('v_lshlrev_b32 v6, 8, v3')
        a('v_lshl_add_u32 v6, v4, 4, v6')
        a('s_lshr_b32 s45, s30, 1')
        a('s_mul_i32 s45, s45, %d' % XB)
        a('s_lshl_b32 s46, s31, 14')
        a('s_add_u32 s45, s45, s46')
        a('s_and_b32 s46, s30, 1')
        a('s_lshl_b32 s46, s46, 7')
        a('s_add_u32 s45, s45, s46')
        a('s_lshl_b32 s46, s3, 5')
        a('s_add_u32 s45, s45, s46')
        if XT:
            a('s_add_u32 s45, s45, 0x%x' % XT)
        a('s_add_u32 s46, s45, 8192')
        a('s_lshl_b32 s44, s31, 8')
        a('s_add_u32 s44, s44, 0x%x' % B2F)
        a('v_lshlrev_b32 v5, 2, v3')
        epi = ['buffer_load_dwordx4 %s, v6, s[20:23], s45 offen' % vr(EP, 4),
               'buffer_load_dwordx4 %s, v6, s[20:23], s46 offen' % vr(EP + 4, 4),
               'buffer_load_dword v%d, v5, s[20:23], s44 offen' % (EP + 8),
               'buffer_load_dword v%d, v5, s[20:23], s44 offen offset:128' % (EP + 10)]
        a('v_bfe_u32 v7, v0, 4, 1')
        a('v_lshl_add_u32 v7, v4, 3, v7')
        a('v_bfe_u32 v8, v0, 2, 2')
        a('v_lshl_add_u32 v7, v8, 1, v7')
        a('v_lshlrev_b32 v7, 2, v7')
        a('s_lshl_b32 s47, s31, 11')
        a('s_lshl_b32 s48, s30, 6')
        a('s_add_u32 s47, s47, s48')
        a('s_lshl_b32 s48, s3, 4')
        a('s_add_u32 s47, s47, s48')
        a('s_lshl_b32 s47, s47, 2')
        a('s_add_u32 s47, s47, 0x%x' % SSP)
        a('s_cmp_eq_u32 s31, 7')
        a('s_cselect_b32 s48, 31, 32')
        a('v_cmp_eq_u32 vcc, s48, v3')
        a('v_cndmask_b32 v8, 1.0, 0, vcc')
    for x in range(1, 4):
        a('s_xor_b32 s33, s3, %d' % x)
        a('s_mul_i32 s33, s33, 12288')
        a('s_add_u32 s33, s33, %d' % ((x - 1) * 4096))
        a('v_add_u32 v%d, s33, v1' % (9 + x))
    a('s_mul_i32 s33, s3, 12288')
    a('v_add_u32 v13, s33, v1')
    EPI_AT = KW - PF - 1
    acc = lambda m, n: vr(ACC + 32 * m + 16 * n, 16)
    for t in range(KW):
        later = min(KW, t + PF) - (t + 1)
        ne = len(epi) if t > EPI_AT else 0
        r = RING + 16 * (t % PF)
        z = '0' if t == 0 else None
        A0, B0, B1, A1 = (vr(r + 4 * n, 4) for n in range(4))
        a('s_waitcnt vmcnt(%d)' % (4 * later + ne + 2))
        if t == 0:
            stamp_mid(a, 0)
        a(mfma32(acc(0, 0), A0, B0, z))
        a('s_waitcnt vmcnt(%d)' % (4 * later + ne + 1))
        a(mfma32(acc(0, 1), A0, B1, z))
        a('s_waitcnt vmcnt(%d)' % (4 * later + ne))
        a(mfma32(acc(1, 0), A1, B0, z))
        a(mfma32(acc(1, 1), A1, B1, z))
        if t + PF < KW:
            for l in loads(t + PF):
                a(l)
        if t == EPI_AT:
            for l in epi:
                a(l)
    stamp_mid(a, 1)
    for x in (1, 2, 3):
        m, rh = x >> 1, x & 1
        for n in range(2):
            for c in range(2):
                a('ds_write_b128 v%d, %s offset:%d' % (
                    9 + x, vr(ACC + 32 * m + 16 * n + 8 * rh + 4 * c, 4), (2 * n + c) * 1024))
    a('s_waitcnt vmcnt(0)')
    own = lambda n, e: ACC + 16 * n + e
    if last:
        for e in range(4):
            a('v_lshlrev_b32 v%d, 16, v%d' % (EP + 8 + 2 * e, EP + e))
            a('v_and_b32 v%d, 0xffff0000, v%d' % (EP + 9 + 2 * e, EP + e))
        for n in range(2):
            for e in range(0, 8, 2):
                a('v_pk_add_f32 %s, %s, %s' % (vr(own(n, e), 2), vr(own(n, e), 2), vr(EP + 8 + e, 2)))
    else:
        for n in range(2):
            for e in range(4):
                a('v_lshlrev_b32 v14, 16, v%d' % (EP + 4 * n + e))
                a('v_and_b32 v15, 0xffff0000, v%d' % (EP + 4 * n + e))
                a('v_pk_add_f32 %s, %s, %s op_sel_hi:[1,0]' % (
                    vr(own(n, 2 * e), 2), vr(own(n, 2 * e), 2), vr(EP + 8 + 2 * n, 2)))
                a('v_pk_add_f32 %s, %s, v[14:15]' % (vr(own(n, 2 * e), 2), vr(own(n, 2 * e), 2)))
    a('s_waitcnt lgkmcnt(0)')
    a('s_barrier')
    for x in range(3):
        for q in range(4):
            a('ds_read_b128 %s, v13 offset:%d' % (vr(RING + 16 * x + 4 * q, 4), x * 4096 + q * 1024))
    for x in range(3):
        for q in range(4):
            a('s_waitcnt lgkmcnt(%d)' % (11 - 4 * x - q))
            for e in range(0, 4, 2):
                o = own(q >> 1, 4 * (q & 1) + e)
                a('v_pk_add_f32 %s, %s, %s' % (vr(o, 2), vr(o, 2), vr(RING + 16 * x + 4 * q + e, 2)))
    for n in range(2):
        for e in range(0, 8, 2):
            a('v_cvt_pk_bf16_f32 v%d, v%d, v%d' % (EP + 4 * n + e // 2, own(n, e), own(n, e + 1)))
    stamp_mid(a, 2)
    osrd = 's[24:27]' if last else 's[20:23]'
    a('buffer_store_dwordx4 %s, v6, %s, s45 offen' % (vr(EP, 4), osrd))
    a('buffer_store_dwordx4 %s, v6, %s, s46 offen' % (vr(EP + 4, 4), osrd))
    if not last:
        Q = RING
        for e in range(0, 8, 2):
            a('v_pk_mul_f32 %s, %s, v[8:9] op_sel_hi:[1,0]' % (vr(Q + 8 + e, 2), vr(own(1, e), 2)))
            a('v_pk_mul_f32 %s, %s, %s' % (vr(Q + e, 2), vr(own(0, e), 2), vr(own(0, e), 2)))
            a('v_pk_fma_f32 %s, %s, %s, %s' % (vr(Q + e, 2), vr(Q + 8 + e, 2), vr(Q + 8 + e, 2), vr(Q + e, 2)))
        for r in range(4):
            a('v_add_f32 v%d, v%d, v%d row_ror:8 row_mask:0xf bank_mask:0x3' % (Q + r, Q + r, Q + r))
        for r in range(4):
            a('v_add_f32 v%d, v%d, v%d row_ror:8 row_mask:0xf bank_mask:0xc' % (Q + r, Q + r + 4, Q + r + 4))
        for r in range(2):
            a('v_add_f32 v%d, v%d, v%d row_half_mirror row_mask:0xf bank_mask:0x5' % (Q + r, Q + r, Q + r))
        for r in range(2):
            a('v_add_f32 v%d, v%d, v%d row_half_mirror row_mask:0xf bank_mask:0xa' % (Q + r, Q + r + 2, Q + r + 2))
        for m in ('[1,0,3,2]', '[2,3,0,1]'):
            for r in range(2):
                a('v_add_f32 v%d, v%d, v%d quad_perm:%s row_mask:0xf bank_mask:0xf' % (Q + r, Q + r, Q + r, m))
        a('v_permlane16_swap_b32 v%d, v%d' % (Q, Q + 1))
        a('v_add_f32 v%d, v%d, v%d' % (Q, Q, Q + 1))
        a('buffer_store_dword v%d, v7, s[20:23], s47 offen' % Q)
    stamp_end(a, 6 if last else 3, 20)
    a.label('%s_end' % name)
    a('s_endpgm')
    return dict(name=name, grid=256, lds=49152, vgpr=RING + 16 * max(PF, 3), agpr=0)


HEADER = '''; GFNet spectral filter + channel-MLP, two interleaved layers, as a list of launches.
'''


def build(extra_launches=()):
    a = Asm()
    d1 = k1(a)
    d2 = k2(a)
    d3, d6 = gemm1(a)
    d4 = gemm2(a, False)
    d5 = k5(a)
    d7 = gemm2(a, True)
    ks = [d1, d2, d3, d4, d5, d6, d7]
    lines, nops = fix_hazards(a.lines)
    out = [HEADER.rstrip()]
    for d in ks + list(extra_launches):
        out.append('; @launch kernel=%s grid=(%d,1,1) block=(256,1,1) lds=%d' % (d['name'], d['grid'], d['lds']))
    out.append('.amdgcn_target "amdgcn-amd-amdhsa--gfx950"')
    out.append('.text')
    out += lines
    out.append('.section .rodata,"a"')
    for d in ks:
        accum = (d['vgpr'] + 3) // 4 * 4
        out.append('.p2align 6')
        out.append('.amdhsa_kernel %s' % d['name'])
        out.append('  .amdhsa_next_free_vgpr %d' % (accum + d['agpr']))
        out.append('  .amdhsa_next_free_sgpr %d' % (102 if OPT['stamp'] else 64))
        out.append('  .amdhsa_accum_offset %d' % accum)
        out.append('  .amdhsa_group_segment_fixed_size 0')
        out.append('  .amdhsa_kernarg_size 88')
        out.append('  .amdhsa_user_sgpr_count 2')
        out.append('  .amdhsa_user_sgpr_kernarg_segment_ptr 1')
        out.append('  .amdhsa_system_sgpr_workgroup_id_x 1')
        out.append('.end_amdhsa_kernel')
    return '\n'.join(out) + '\n', nops


if __name__ == '__main__':
    dst = 'cdna_kernels/%s.s' % NAME
    for arg in sys.argv[1:]:
        if arg.startswith('-o'):
            dst = arg[2:]
        else:
            k, v = arg.split('=')
            OPT[k] = type(OPT[k])(int(v)) if not isinstance(OPT[k], str) else v
    text, nops = build()
    open(dst, 'w').write(text)
    print('wrote %s: %d bytes, %d wait states inserted' % (dst, len(text), nops))
```
